```python
import torch

def _softmax(x, axis=-1):
    return torch.softmax(x, dim=axis)

def _gelu(x):
    return torch.nn.functional.gelu(x, approximate='tanh')

def _silu(x):
    return torch.nn.functional.silu(x)

def _sigmoid(x):
    return torch.sigmoid(x)

def _layernorm(x, axis=-1, eps=1e-05):
    m = x.mean(dim=axis, keepdim=True)
    v = x.var(dim=axis, keepdim=True, unbiased=False)
    return (x - m) / torch.sqrt(v + eps)

def _scatter_add(tgt, idx, src, axis=0):
    return tgt.clone().index_add_(axis, idx, src)

def _segment_sum(src, seg, n):
    out = torch.zeros((n,) + src.shape[1:], dtype=src.dtype)
    return out.index_add_(0, seg, src)

def _pad(x, pw):
    flat = tuple((v for pair in reversed(pw) for v in pair))
    return torch.nn.functional.pad(x, flat)
kernel_name = 'adaLN_cond__softmax_full_mha__mixer_gmlp__prompt'

def setup_inputs():

    _w = lambda a: (lambda t: t.to(torch.bfloat16) if t.is_floating_point() else t)(torch.as_tensor(a))

    def _A_setup():
        B, S, D = (1, 2048, 640)
        return {'x': _w((lambda *s: torch.randn(*s, dtype=torch.bfloat16) * 0.05)(B, S, D)), 'wqkv': _w((lambda *s: torch.randn(*s, dtype=torch.bfloat16) * 0.05)(D, 3 * D)), 'wo': _w((lambda *s: torch.randn(*s, dtype=torch.bfloat16) * 0.05)(D, D))}
    _A_in = _A_setup()

    def _B_setup():
        B, S, D, F = (1, 2048, 640, 1728)
        Fh = F // 2
        return {'x': _w((lambda *s: torch.randn(*s, dtype=torch.bfloat16) * 0.05)(B, S, D)), 'w_in': _w((lambda *s: torch.randn(*s, dtype=torch.bfloat16) * 0.4)(D, 2 * Fh)), 'w_sp': _w(0.01 * (lambda *s: torch.randn(*s, dtype=torch.bfloat16) * 0.4)(S, S)), 'b_sp': _w(1.0 + 0.01 * (lambda *s: torch.randn(*s, dtype=torch.bfloat16) * 0.05)(S)), 'w_out': _w((lambda *s: torch.randn(*s, dtype=torch.bfloat16) * 0.05)(Fh, D))}
    _B_in = _B_setup()
    return {'A_x': _A_in['x'], 'A_wqkv': _A_in['wqkv'], 'A_wo': _A_in['wo'], 'B_x': _B_in['x'], 'B_w_in': _B_in['w_in'], 'B_w_sp': _B_in['w_sp'], 'B_b_sp': _B_in['b_sp'], 'B_w_out': _B_in['w_out'], 'c': _w((lambda *s: torch.randn(*s, dtype=torch.bfloat16) * 0.1)(1, 640) * 8.0), 'w_mod': _w((lambda *s: torch.randn(*s, dtype=torch.bfloat16) * 0.1)(640, 6 * 640) * 640 ** (-0.5) * 8.0)}

def reference(A_x, A_wqkv, A_wo, B_x, B_w_in, B_w_sp, B_b_sp, B_w_out, c, w_mod):

    def _A_ref(x, wqkv, wo):
        B, S, D = x.shape
        H = 32
        Dh = D // H
        qkv = (lambda x, *d: x.permute(*d))((x @ wqkv).reshape(B, S, 3, H, Dh), 2, 0, 3, 1, 4)
        q, k, v = (qkv[0], qkv[1], qkv[2])
        scale = Dh ** (-0.5)
        scores = torch.einsum('bhqd,bhkd->bhqk', q, k) * scale
        p = _softmax(scores, axis=-1)
        o = torch.einsum('bhqk,bhkd->bhqd', p, v)
        return (lambda x, *d: x.permute(*d))(o, 0, 2, 1, 3).reshape(B, S, D) @ wo

    def _B_ref(x, w_in, w_sp, b_sp, w_out):
        B, S, D = x.shape
        F = w_in.shape[-1]
        Fh = F // 2
        z = _gelu(torch.einsum('bsd,df->bsf', x, w_in))
        z1 = z[..., :Fh].clone()
        z2 = _layernorm(z[..., Fh:], axis=-1)
        g = torch.einsum('ts,bsf->btf', w_sp, z2) + b_sp[None, :, None]
        return torch.einsum('bsf,fd->bsd', z1 * g, w_out)
    x = A_x
    mod = (_silu(c) @ w_mod).reshape(c.shape[0], 6, 1, -1)
    sa, ca, ga, sb, cb, gb = (mod[:, 0].clone(), mod[:, 1].clone(), mod[:, 2].clone(), mod[:, 3].clone(), mod[:, 4].clone(), mod[:, 5].clone())
    h = _layernorm(x, axis=-1) * (1 + ca) + sa
    x = x + ga * _A_ref(h, A_wqkv, A_wo)
    h = _layernorm(x, axis=-1) * (1 + cb) + sb
    x = x + gb * _B_ref(h, B_w_in, B_w_sp, B_b_sp, B_w_out)
    return x
```

```python
import re

REG_RE = re.compile(r"\b([vsa])(\d+)\b|\b([vsa])\[(\d+):(\d+)\]|\b(vcc|exec|m0|scc)\b")

TRANS = ("v_exp_f32", "v_log_f32", "v_rcp_f32", "v_rsq_f32", "v_sqrt_f32", "v_sin_f32", "v_cos_f32",
         "v_exp_f16", "v_rcp_iflag_f32")


def regs_of(text):
    out = []
    for m in REG_RE.finditer(text):
        if m.group(1):
            out.append((m.group(1), int(m.group(2))))
        elif m.group(3):
            out += [(m.group(3), i) for i in range(int(m.group(4)), int(m.group(5)) + 1)]
        else:
            n = m.group(6)
            if n == "vcc":
                out += [("s", 106), ("s", 107)]
            elif n == "exec":
                out += [("x", 0)]
            elif n == "m0":
                out += [("m", 0)]
    return out


def split_ops(s):
    ops, depth, cur = [], 0, ""
    for ch in s:
        if ch == "[":
            depth += 1
        if ch == "]":
            depth -= 1
        if ch == "," and depth == 0:
            ops.append(cur.strip())
            cur = ""
        else:
            cur += ch
    if cur.strip():
        ops.append(cur.strip())
    return ops


class Ins:
    __slots__ = ("text", "op", "wr", "rd", "kind", "passes", "srcc", "srcab", "label", "target", "states", "wide_store_data", "dpp", "sgpr_const_rd", "laneSel")

    def __init__(self, text):
        self.text = text
        t = text.split(";")[0].strip()
        self.label = None
        self.target = None
        self.wr, self.rd = [], []
        self.kind = "other"
        self.passes = 0
        self.srcc, self.srcab = [], []
        self.states = 1
        self.wide_store_data = []
        self.dpp = False
        self.op = ""
        if not t:
            self.kind = "none"
            self.states = 0
            return
        if t.endswith(":"):
            self.label = t[:-1]
            self.kind = "label"
            self.states = 0
            return
        if t.startswith("."):
            self.kind = "none"
            self.states = 0
            return
        parts = t.split(None, 1)
        op = parts[0]
        rest = parts[1] if len(parts) > 1 else ""
        self.op = op
        ops = split_ops(rest)
        if op == "s_nop":
            self.states = int(rest, 0) + 1
            self.kind = "nop"
            return
        if op.startswith("s_cbranch") or op == "s_branch":
            self.kind = "branch"
            self.target = rest.strip()
            return
        if op.startswith("v_mfma"):
            self.kind = "mfma"
            self.wr = regs_of(ops[0])
            self.srcab = regs_of(ops[1]) + regs_of(ops[2])
            self.srcc = regs_of(ops[3].split()[0])
            self.rd = self.srcab + self.srcc
            self.passes = 8 if "32x32" in op else 4
            return
        if op.startswith("v_"):
            self.kind = "valu"
            self.dpp = any(k in rest for k in ("row_", "quad_perm", "wave_", "row_bcast", "dpp"))
            if op.startswith("v_cmp"):
                self.wr = regs_of(ops[0])
                if op.startswith("v_cmpx"):
                    self.wr += [("x", 0)]
                self.rd = [r for o in ops[1:] for r in regs_of(o)]
            elif op.startswith("v_permlane") and "swap" in op:
                self.wr = regs_of(ops[0]) + regs_of(ops[1])
                self.rd = list(self.wr)
            elif op in ("v_add_co_u32", "v_sub_co_u32", "v_addc_co_u32", "v_subb_co_u32", "v_div_scale_f32", "v_mad_u64_u32"):
                self.wr = regs_of(ops[0]) + regs_of(ops[1])
                self.rd = [r for o in ops[2:] for r in regs_of(o)]
            else:
                self.wr = regs_of(ops[0])
                self.rd = [r for o in ops[1:] for r in regs_of(o)]
                if op == "v_dot2_f32_bf16":
                    self.srcab = regs_of(ops[1]) + regs_of(ops[2])
                if op.startswith("v_dot2c"):
                    self.srcab = regs_of(ops[1]) + regs_of(ops[2])
                if op.startswith("v_fmac") or op.startswith("v_dot2c") or op.startswith("v_pk_fmac") or self.dpp or op == "v_writelane_b32":
                    self.rd += self.wr
            return
        if op.startswith("buffer_") or op.startswith("global_") or op.startswith("flat_"):
            self.kind = "vmem"
            allr = regs_of(rest)
            is_lds = re.search(r"\blds\b", rest) is not None or "load_lds" in op
            if "load" in op and not is_lds:
                self.wr = regs_of(ops[0])
                self.rd = [r for o in ops[1:] for r in regs_of(o)]
            else:
                self.rd = allr
                if is_lds:
                    self.rd += [("m", 0)]
                    self.kind = "vmem_lds"
                if "atomic" in op and re.search(r"\bsc0\b", rest):
                    self.wr = regs_of(ops[0])
                if "store" in op and ("x4" in op or "x3" in op):
                    d = ops[0] if op.startswith("buffer_") else ops[1]
                    self.wide_store_data = regs_of(d)
            return
        if op.startswith("ds_"):
            self.kind = "ds"
            if "read" in op or "bpermute" in op or "permute" in op or "swizzle" in op or "_rtn" in op:
                self.wr = regs_of(ops[0])
                self.rd = [r for o in ops[1:] for r in regs_of(o)]
            else:
                self.rd = regs_of(rest)
            return
        if op.startswith("s_"):
            self.kind = "salu"
            if op.startswith("s_cmp") or op in ("s_waitcnt", "s_barrier", "s_endpgm", "s_setprio", "s_sleep", "s_setreg_b32", "s_bitcmp0_b32", "s_bitcmp1_b32"):
                self.rd = regs_of(rest)
            else:
                self.wr = regs_of(ops[0]) if ops else []
                self.rd = [r for o in ops[1:] for r in regs_of(o)]
                if "saveexec" in op:
                    self.wr += [("x", 0)]
            if op.startswith("s_load") or op.startswith("s_buffer_load") or op.startswith("s_memtime") or op.startswith("s_memrealtime"):
                self.kind = "smem"
            return
        raise ValueError("unknown instruction: " + text)


def required_gap(p, c):
    need = 0
    pw, cr, cw = set(p.wr), set(c.rd), set(c.wr)
    isv = lambda r: r[0] in ("v", "a")
    if p.kind == "valu":
        pv = {r for r in pw if isv(r)}
        ps = {r for r in pw if r[0] == "s"}
        if c.kind == "mfma" and pv & cr:
            need = max(need, 2)
        if c.kind == "valu":
            if p.op in TRANS and pv & cr and c.op not in TRANS:
                need = max(need, 1)
            if p.op in TRANS and pv & cr and c.op in TRANS:
                need = max(need, 1)
            if c.dpp and pv & cr:
                need = max(need, 2)
            if c.op.startswith("v_permlane") and pv & cr:
                need = max(need, 2)
            if c.op in ("v_readfirstlane_b32", "v_readlane_b32") and pv & cr:
                need = max(need, 1)
            if ps & cr:
                need = max(need, 4 if c.op in ("v_readlane_b32", "v_writelane_b32", "v_div_fmas_f32") else 2)
            if c.op == "v_div_fmas_f32" and ps:
                need = max(need, 4)
            if p.op.startswith("v_dot2") and (pv & (cr | cw)) and not (c.op == p.op):
                need = max(need, 3)
            if p.op.startswith("v_dot2") and (pv & set(c.srcab)) and c.op == p.op:
                need = max(need, 3)
            if ("x", 0) in pw:
                need = max(need, 5)
            if "sdwa" in p.op and pv & (cr | cw):
                need = max(need, 1)
        if p.op in TRANS and c.kind in ("mfma", "vmem", "ds", "vmem_lds") and pv & cr:
            need = max(need, 2 if c.kind == "mfma" else 1)
        if p.op.startswith("v_dot2") and c.kind in ("mfma", "vmem", "ds", "vmem_lds") and pv & cr:
            need = max(need, 3)
        if c.kind in ("vmem", "vmem_lds") and ps & cr:
            need = max(need, 5)
        if c.kind == "salu" and ps & cr:
            need = max(need, 1)
        if c.kind == "mfma" and ("x", 0) in pw:
            need = max(need, 4)
    if p.kind == "mfma":
        n8 = {4: 8, 8: 12}[p.passes]
        n6 = {4: 6, 8: 10}[p.passes]
        if c.kind == "mfma":
            if pw & set(c.srcab):
                need = max(need, n8)
            if pw & set(c.srcc):
                if not (c.srcc == p.wr and c.passes == p.passes):
                    need = max(need, n6)
            elif pw & cw:
                need = max(need, n6)
        elif c.kind in ("valu", "vmem", "ds", "vmem_lds"):
            if pw & (cr | cw):
                need = max(need, n8)
            if c.kind == "valu" and set(p.srcc) & cw:
                need = max(need, {4: 3, 8: 7}[p.passes])
    if p.kind == "salu" and ("m", 0) in pw and ("m", 0) in cr and c.kind in ("vmem_lds", "ds"):
        need = max(need, 1)
    if p.wide_store_data and set(p.wide_store_data) & cw:
        need = max(need, 2)
    return need


class Prog:
    _uid = 0

    def __init__(self):
        self.ins = []
        self.auto = True
        self.vq = []
        self.lq = []
        self._tag = 0

    def reset(self):
        self.vq = []
        self.lq = []

    def _apply_wait(self, text):
        m = re.search(r"vmcnt\((\d+)\)", text)
        if m:
            n = int(m.group(1))
            self.vq = self.vq[len(self.vq) - n:] if n < len(self.vq) else self.vq
            if n == 0:
                self.vq = []
        m = re.search(r"lgkmcnt\((\d+)\)", text)
        if m:
            n = int(m.group(1))
            if n == 0:
                self.lq = []
            elif not any(e[2] for e in self.lq) and n < len(self.lq):
                self.lq = self.lq[len(self.lq) - n:]

    def _emit_wait(self, vn, ln):
        parts = []
        if vn is not None:
            parts.append(f"vmcnt({min(vn, 63)})")
        if ln is not None:
            parts.append(f"lgkmcnt({min(ln, 15)})")
        if parts:
            t = "s_waitcnt " + " ".join(parts)
            self.ins.append(Ins(t))
            self._apply_wait(t)

    def wait_vm(self, tag):
        for i, e in enumerate(self.vq):
            if e[0] == tag:
                self._emit_wait(len(self.vq) - 1 - i, None)
                return

    def wait_lgkm(self, tag):
        for i, e in enumerate(self.lq):
            if e[0] == tag:
                n = len(self.lq) - 1 - i
                if any(x[2] for x in self.lq):
                    n = 0
                self._emit_wait(None, n)
                return

    def __call__(self, text):
        tag = None
        for line in text.split("\n"):
            line = line.strip()
            if not line:
                continue
            x = Ins(line)
            if self.auto and x.states:
                touched = set(x.rd) | set(x.wr)
                vn = ln = None
                for i, e in enumerate(self.vq):
                    if e[1] & touched:
                        vn = len(self.vq) - 1 - i
                for i, e in enumerate(self.lq):
                    if e[1] & touched:
                        ln = len(self.lq) - 1 - i
                if ln is not None and any(e[2] for e in self.lq):
                    ln = 0
                self._emit_wait(vn, ln)
            self.ins.append(x)
            if x.op == "s_waitcnt":
                self._apply_wait(line)
            elif x.kind in ("vmem", "vmem_lds"):
                self._tag += 1
                tag = self._tag
                self.vq.append((tag, set(x.wr)))
                assert len(self.vq) <= 63 or not self.auto, "too many outstanding vmem ops"
            elif x.kind in ("ds", "smem"):
                self._tag += 1
                tag = self._tag
                self.lq.append((tag, set(x.wr), x.kind == "smem"))
        return tag

    def label(self, base):
        Prog._uid += 1
        return f"L_{base}_{Prog._uid}"

    def _fix_linear(self, seq):
        out = []
        for c in seq:
            if c.states and c.kind not in ("nop",):
                need = 0
                dist = 0
                for p in reversed(out):
                    if dist >= 21:
                        break
                    if p.kind in ("valu", "mfma", "salu", "vmem"):
                        g = required_gap(p, c) - dist
                        need = max(need, g)
                    dist += p.states
                while need > 0:
                    n = min(need, 16)
                    out.append(Ins(f"s_nop {n-1}"))
                    need -= n
            out.append(c)
        return out

    def finalize(self):
        seq = self._fix_linear(self.ins)
        changed = True
        while changed:
            changed = False
            labels = {x.label: i for i, x in enumerate(seq) if x.label}
            for i, b in enumerate(seq):
                if b.kind != "branch" or b.target not in labels:
                    continue
                t = labels[b.target]
                hist = seq[max(0, i - 40): i + 1]
                need = 0
                d_after = 0
                for c in seq[t: t + 40]:
                    if d_after >= 21:
                        break
                    if c.states and c.kind != "nop":
                        dist = d_after
                        for p in reversed(hist):
                            if dist >= 21:
                                break
                            if p.kind in ("valu", "mfma", "salu", "vmem"):
                                need = max(need, required_gap(p, c) - dist)
                            dist += p.states
                    d_after += c.states
                    if c.kind == "branch" and c.op == "s_branch":
                        break
                if need > 0:
                    ins = []
                    while need > 0:
                        n = min(need, 16)
                        ins.append(Ins(f"s_nop {n-1}"))
                        need -= n
                    seq[i:i] = ins
                    changed = True
                    break
        return seq

    def text(self):
        lines = []
        for x in self.finalize():
            lines.append(x.text if (x.label or x.text.startswith(".")) else "    " + x.text)
        return "\n".join(lines) + "\n"

    def max_regs(self):
        mv = ms = ma = -1
        for x in self.ins:
            for r in x.wr + x.rd:
                if r[0] == "v":
                    mv = max(mv, r[1])
                elif r[0] == "a":
                    ma = max(ma, r[1])
                elif r[0] == "s" and r[1] < 106:
                    ms = max(ms, r[1])
        return mv, ms, ma


def vr(a, n=1):
    return f"v{a}" if n == 1 else f"v[{a}:{a+n-1}]"


def sr(a, n=1):
    return f"s{a}" if n == 1 else f"s[{a}:{a+n-1}]"


def ar(a, n=1):
    return f"a{a}" if n == 1 else f"a[{a}:{a+n-1}]"
```

```python
from asmlib import Prog, vr, sr, ar

WS_SIZE = 0x10000000
MODP = 0x0
MODF = 0x10000
CSB = 0x14000
ST1 = 0x20000
ST2 = 0x40000
XH = 0x100000
QKV = 0x400000
PART = 0x280000
OU = 0xC00000
X1 = 0xF00000
X1C = 0x1200000
Z1 = 0x1500000
Z2 = 0x1900000
UU = 0x1D00000

STAMPS = 0x3000000
import os
EXP = os.environ.get("EXP", "")
DIAG = bool(os.environ.get("DIAG"))
KA = dict(x=(0, 2048 * 640 * 2), wqkv=(8, 640 * 1920 * 2), wo=(16, 640 * 640 * 2), w_in=(32, 640 * 1728 * 2),
          w_sp=(40, 2048 * 2048 * 2), b_sp=(48, 2048 * 2), w_out=(56, 864 * 640 * 2), c=(64, 640 * 2),
          w_mod=(72, 640 * 3840 * 2), out=(80, 2048 * 640 * 2), dbg=(88, 256), ws=(96, WS_SIZE))


class Kernel:
    def __init__(self, name, grid, block, lds):
        self.name, self.grid, self.block, self.lds = name, grid, block, lds
        self.p = Prog()
        self.end = self.p.label("end")

    def begin(self):
        p = self.p
        p(f"s_cmp_ge_u32 s2, {self.grid}")
        p(f"s_cbranch_scc1 {self.end}")
        if DIAG:
            for i in range(16):
                p(f"s_mov_b32 s{70+i}, 0")
        self.rt_stamp(86)
        self.stamp(0)

    def srd(self, s, key):
        off, size = KA[key]
        p = self.p
        p(f"s_load_dwordx2 {sr(s, 2)}, s[0:1], {off}")
        p(f"s_mov_b32 s{s+2}, {size:#x}")
        p(f"s_mov_b32 s{s+3}, 0x20000")

    def stamp(self, i):
        if not DIAG:
            return
        p = self.p
        p("s_memtime s[68:69]")
        p("s_waitcnt lgkmcnt(0)")
        p(f"s_mov_b32 s{70+i}, s68")
        self.nst = max(getattr(self, "nst", 0), i + 1)

    def rt_stamp(self, sreg):
        if not DIAG:
            return
        p = self.p
        p("s_memrealtime s[68:69]")
        p("s_waitcnt lgkmcnt(0)")
        p(f"s_mov_b32 s{sreg}, s68")

    def dump_stamps(self, sws, kidx, v):
        if not DIAG:
            return
        p = self.p
        p("s_waitcnt vmcnt(0)")
        self.stamp(15)
        self.rt_stamp(87)
        p("s_mov_b64 exec, -1")
        p(f"v_lshrrev_b32 v{v}, 6, v0")
        p(f"v_lshlrev_b32 v{v}, 7, v{v}")
        p("s_lshl_b32 s66, s2, 11")
        p(f"s_add_u32 s66, s66, {STAMPS + kidx*0x80000:#x}")
        for i in range(18):
            p(f"v_mov_b32 v{v+1}, s{70+i}")
            p(f"buffer_store_dword v{v+1}, v{v}, {sr(sws,4)}, s66 offen offset:{4*i}")

    def finish(self):
        p = self.p
        p.reset()
        p(f"{self.end}:")
        p("s_endpgm")

    def text(self):
        mv, ms, ma = self.p.max_regs()
        nv = mv + 1
        acc_off = (nv + 3) // 4 * 4
        total = acc_off + (ma + 1) if ma >= 0 else nv
        acc_off = max(acc_off, 4)
        self.nvgpr = total
        code = (f".globl {self.name}\n.p2align 8\n.type {self.name},@function\n{self.name}:\n" + self.p.text())
        desc = f""".p2align 6
.amdhsa_kernel {self.name}
  .amdhsa_next_free_vgpr {total}
  .amdhsa_next_free_sgpr 102
  .amdhsa_accum_offset {acc_off}
  .amdhsa_group_segment_fixed_size 0
  .amdhsa_kernarg_size 104
  .amdhsa_user_sgpr_count 2
  .amdhsa_user_sgpr_kernarg_segment_ptr 1
  .amdhsa_system_sgpr_workgroup_id_x 1
.end_amdhsa_kernel
"""
        return code, desc

    def launch_line(self):
        return f"; @launch kernel={self.name} grid=({self.grid},1,1) block=({self.block},1,1) lds={self.lds}"


class Alloc:
    def __init__(self, start=1):
        self.n = start

    def __call__(self, cnt=1, align=None):
        if align is None:
            align = 2 if cnt >= 2 else 1
        self.n = (self.n + align - 1) // align * align
        r = self.n
        self.n += cnt
        return r


def xsum_half(p, v, t):
    p(f"v_mov_b32 v{t}, v{v}")
    p(f"v_permlane32_swap_b32 v{v}, v{t}")
    p(f"v_add_f32 v{v}, v{v}, v{t}")


def xsum_16(p, v, t):
    p(f"v_mov_b32 v{t}, v{v}")
    p(f"v_permlane16_swap_b32 v{v}, v{t}")
    p(f"v_add_f32 v{v}, v{v}, v{t}")


def f32bits(x):
    import struct
    return struct.unpack("<I", struct.pack("<f", x))[0]
```

```python
import sys, importlib
sys.path.insert(0, "gen")
from common import *

HEAD = """; adaLN + MHA + gMLP block, multi-kernel pipeline (generated by gen/gen.py)
"""


def assemble(kernels, path):
    codes, descs = [], []
    for k in kernels:
        c, d = k.text()
        codes.append(c)
        descs.append(d)
    out = HEAD + "\n".join(k.launch_line() for k in kernels) + "\n"
    out += '.amdgcn_target "amdgcn-amd-amdhsa--gfx950"\n.text\n'
    out += "\n".join(codes)
    out += '.section .rodata,"a"\n' + "".join(descs)
    open(path, "w").write(out)
    for k in kernels:
        print(k.name, "vgpr", k.nvgpr, "lds", k.lds, "ins", len(k.p.ins))


if __name__ == "__main__":
    names = sys.argv[2:] or ["k1", "k2", "k3", "k4", "k5", "k6", "k7"]
    ks = [importlib.import_module(n).build() for n in names]
    assemble(ks, sys.argv[1])
```

```python
from asmlib import Prog, vr, sr, ar

WS_SIZE = 0x10000000
MODP = 0x0
MODF = 0x10000
CSB = 0x60000
ST1 = 0x20000
ST2 = 0x40000
MUP = 0x50000
XH = 0x100000
QKV = 0x400000
PART = 0x280000
OU = 0xC00000
X1 = 0xF00000
X1C = 0x1200000
Z1 = 0x1500000
Z2 = 0x1900000
UU = 0x1D00000

STAMPS = 0x3000000
CUR = [0]
import os
EXP = os.environ.get("EXP", "")
DIAG = bool(os.environ.get("DIAG"))
KA = dict(x=(0, 2048 * 640 * 2), wqkv=(8, 640 * 1920 * 2), wo=(16, 640 * 640 * 2), w_in=(32, 640 * 1728 * 2),
          w_sp=(40, 2048 * 2048 * 2), b_sp=(48, 2048 * 2), w_out=(56, 864 * 640 * 2), c=(64, 640 * 2),
          w_mod=(72, 640 * 3840 * 2), out=(80, 2048 * 640 * 2), dbg=(88, 256), ws=(96, WS_SIZE))


class Kernel:
    def __init__(self, name, grid, block, lds):
        self.name, self.grid, self.block, self.lds = name, grid, block, lds
        self.p = Prog()
        self.end = self.p.label("end")

    def begin(self):
        p = self.p
        p(f"s_cmp_ge_u32 s2, {self.grid}")
        p(f"s_cbranch_scc1 {self.end}")
        if "badmap" in EXP:
            p("s_lshr_b32 s3, s2, 5")
            p("s_and_b32 s2, s2, 31")
            p("s_lshl_b32 s2, s2, 3")
            p("s_or_b32 s2, s2, s3")
        if DIAG:
            for i in range(16):
                p(f"s_mov_b32 s{70+i}, 0")
        self.rt_stamp(86)
        self.stamp(0)

    def srd(self, s, key):
        off, size = KA[key]
        p = self.p
        p(f"s_load_dwordx2 {sr(s, 2)}, s[0:1], {off}")
        p(f"s_mov_b32 s{s+2}, {size:#x}")
        p(f"s_mov_b32 s{s+3}, 0x20000")

    def stamp(self, i):
        if not DIAG:
            return
        p = self.p
        p("s_memtime s[68:69]")
        p("s_waitcnt lgkmcnt(0)")
        p(f"s_mov_b32 s{70+i}, s68")
        self.nst = max(getattr(self, "nst", 0), i + 1)

    def rt_stamp(self, sreg):
        if not DIAG:
            return
        p = self.p
        p("s_memrealtime s[68:69]")
        p("s_waitcnt lgkmcnt(0)")
        p(f"s_mov_b32 s{sreg}, s68")

    def dump_stamps(self, sws, kidx, v):
        if not DIAG:
            return
        p = self.p
        kidx = CUR[0]
        p("s_waitcnt vmcnt(0)")
        self.stamp(15)
        self.rt_stamp(87)
        p("s_mov_b64 exec, -1")
        p(f"v_lshrrev_b32 v{v}, 6, v0")
        p(f"v_lshlrev_b32 v{v}, 7, v{v}")
        p("s_lshl_b32 s66, s2, 11")
        p(f"s_add_u32 s66, s66, {STAMPS + kidx*0x80000:#x}")
        for i in range(18):
            p(f"v_mov_b32 v{v+1}, s{70+i}")
            p(f"buffer_store_dword v{v+1}, v{v}, {sr(sws,4)}, s66 offen offset:{4*i}")

    def finish(self):
        p = self.p
        p.reset()
        p(f"{self.end}:")
        p("s_endpgm")

    def text(self):
        mv, ms, ma = self.p.max_regs()
        nv = mv + 1
        acc_off = (nv + 3) // 4 * 4
        total = acc_off + (ma + 1) if ma >= 0 else nv
        acc_off = max(acc_off, 4)
        self.nvgpr = total
        code = (f".globl {self.name}\n.p2align 8\n.type {self.name},@function\n{self.name}:\n" + self.p.text())
        desc = f""".p2align 6
.amdhsa_kernel {self.name}
  .amdhsa_next_free_vgpr {total}
  .amdhsa_next_free_sgpr 102
  .amdhsa_accum_offset {acc_off}
  .amdhsa_group_segment_fixed_size 0
  .amdhsa_kernarg_size 104
  .amdhsa_user_sgpr_count 2
  .amdhsa_user_sgpr_kernarg_segment_ptr 1
  .amdhsa_system_sgpr_workgroup_id_x 1
.end_amdhsa_kernel
"""
        return code, desc

    def launch_line(self):
        return f"; @launch kernel={self.name} grid=({self.grid},1,1) block=({self.block},1,1) lds={self.lds}"


class Alloc:
    def __init__(self, start=1):
        self.n = start

    def __call__(self, cnt=1, align=None):
        if align is None:
            align = 2 if cnt >= 2 else 1
        self.n = (self.n + align - 1) // align * align
        r = self.n
        self.n += cnt
        return r


def xsum_half(p, v, t):
    p(f"v_mov_b32 v{t}, v{v}")
    p(f"v_permlane32_swap_b32 v{v}, v{t}")
    p(f"v_add_f32 v{v}, v{v}, v{t}")


def xsum_16(p, v, t):
    p(f"v_mov_b32 v{t}, v{v}")
    p(f"v_permlane16_swap_b32 v{v}, v{t}")
    p(f"v_add_f32 v{v}, v{v}, v{t}")


def f32bits(x):
    import struct
    return struct.unpack("<I", struct.pack("<f", x))[0]


def prefetch(p, entries, sSLOT, sXCD, vOFF, vDUM, st):
    for srd, first, count, base, xm, limit, flags in entries:
        L = p.label("pf")
        p(f"s_sub_u32 s{st}, s{sSLOT}, {first}")
        p(f"s_cmp_lt_u32 s{st}, {count}")
        p(f"s_cbranch_scc0 {L}")
        if xm:
            p(f"s_mul_i32 s{st+1}, s{sXCD}, {xm}")
            p(f"s_add_u32 s{st}, s{st}, s{st+1}")
        if limit is not None:
            p(f"s_min_u32 s{st}, s{st}, {limit-1}")
        p(f"s_lshl_b32 s{st}, s{st}, 13")
        if base:
            p(f"s_add_u32 s{st}, s{st}, {base:#x}")
        p(f"buffer_load_dword v{vDUM}, v{vOFF}, {sr(srd,4)}, s{st} offen {flags}".rstrip())
        p(f"{L}:")


NAMES = ["k1prep_kernel", "k2qkv_kernel", "k3attn_kernel", "k4wo_kernel", "k5win_kernel", "k6sp_kernel", "k7out_kernel", "L_text_end"]


def code_pf(p, idx, sWAVE, nwaves, st):
    if "nocpf" in EXP or len(ORDER) < 7:
        return
    L = p.label("pc")
    p(f"s_getpc_b64 {sr(st,2)}")
    p(f"{L}:")
    p(f"s_lshr_b32 s{st+2}, s2, 3")
    p(f"s_mul_i32 s{st+2}, s{st+2}, {nwaves}")
    p(f"s_add_u32 s{st+2}, s{st+2}, s{sWAVE}")
    p(f"s_lshl_b32 s{st+2}, s{st+2}, 7")
    p(f"s_min_u32 s{st+2}, s{st+2}, {NAMES[idx+1]}-{NAMES[idx]}-4")
    p(f"s_add_u32 s{st+2}, s{st+2}, {NAMES[idx]}-{L}")
    p(f"s_load_dword s{st+3}, {sr(st,2)}, s{st+2}")


ORDER = []
```

```python
import sys, importlib
sys.path.insert(0, "gen")
from common import *

HEAD = """; adaLN + MHA + gMLP block, multi-kernel pipeline (generated by gen/gen.py)
"""


def assemble(kernels, path):
    codes, descs = [], []
    for k in kernels:
        c, d = k.text()
        codes.append(c)
        descs.append(d)
    out = HEAD + "\n".join(k.launch_line() for k in kernels) + "\n"
    out += '.amdgcn_target "amdgcn-amd-amdhsa--gfx950"\n.text\n'
    out += "\n".join(codes) + "L_text_end:\n"
    out += '.section .rodata,"a"\n' + "".join(descs)
    open(path, "w").write(out)
    for k in kernels:
        print(k.name, "vgpr", k.nvgpr, "lds", k.lds, "ins", len(k.p.ins))


if __name__ == "__main__":
    names = sys.argv[2:] or ["k1", "k2", "k3", "k4", "k5", "k6", "k7"]
    ks = []
    ORDER.extend(names)
    for i, n in enumerate(names):
        CUR[0] = i
        ks.append(importlib.import_module(n).build())
    assemble(ks, sys.argv[1])
```

```python
import sys, importlib
sys.path.insert(0, "gen")
from common import *
import re
SC = os.environ.get('SC', '1234567')

HEAD = """; adaLN + MHA + gMLP block, multi-kernel pipeline (generated by gen/gen.py)
"""


def assemble(kernels, path):
    codes, descs = [], []
    for k in kernels:
        c, d = k.text()
        idx = NAMES.index(k.name) + 1
        if str(idx) in SC:
            c = re.sub(r"(buffer_store_dword[^\n]*)", r"\1 sc0 sc1", c)
        codes.append(c)
        descs.append(d)
    out = HEAD + "\n".join(k.launch_line() for k in kernels) + "\n"
    out += '.amdgcn_target "amdgcn-amd-amdhsa--gfx950"\n.text\n'
    out += "\n".join(codes) + "L_text_end:\n"
    out += '.section .rodata,"a"\n' + "".join(descs)
    open(path, "w").write(out)
    for k in kernels:
        print(k.name, "vgpr", k.nvgpr, "lds", k.lds, "ins", len(k.p.ins))


if __name__ == "__main__":
    names = sys.argv[2:] or ["k1", "k2", "k3", "k4", "k5", "k6", "k7"]
    ks = []
    ORDER.extend(names)
    for i, n in enumerate(names):
        CUR[0] = i
        ks.append(importlib.import_module(n).build())
    assemble(ks, sys.argv[1])
```

```python
from asmlib import Prog, vr, sr, ar

WS_SIZE = 0x10000000
MODP = 0x0
MODF = 0x10000
CSB = 0x60000
ST1 = 0x20000
ST2 = 0x40000
FLG = 0x70000
FLG2 = 0x78000
MUP = 0x50000
XH = 0x100000
QKV = 0x400000
PART = 0x280000
OU = 0xC00000
X1 = 0xF00000
X1C = 0x1200000
Z1 = 0x1500000
Z2 = 0x1900000
UU = 0x1D00000
WOP = 0x2100000
WO2 = 0x2300000

STAMPS = 0x3000000
CUR = [0]
import os
EXP = os.environ.get("EXP", "")
DIAG = bool(os.environ.get("DIAG"))
KA = dict(x=(0, 2048 * 640 * 2), wqkv=(8, 640 * 1920 * 2), wo=(16, 640 * 640 * 2), w_in=(32, 640 * 1728 * 2),
          w_sp=(40, 2048 * 2048 * 2), b_sp=(48, 2048 * 2), w_out=(56, 864 * 640 * 2), c=(64, 640 * 2),
          w_mod=(72, 640 * 3840 * 2), out=(80, 2048 * 640 * 2), dbg=(88, 256), ws=(96, WS_SIZE))


class Kernel:
    def __init__(self, name, grid, block, lds):
        self.name, self.grid, self.block, self.lds = name, grid, block, lds
        self.p = Prog()
        self.end = self.p.label("end")

    def begin(self):
        p = self.p
        p(f"s_cmp_ge_u32 s2, {self.grid}")
        p(f"s_cbranch_scc1 {self.end}")
        if "badmap" in EXP:
            p("s_lshr_b32 s3, s2, 5")
            p("s_and_b32 s2, s2, 31")
            p("s_lshl_b32 s2, s2, 3")
            p("s_or_b32 s2, s2, s3")
        if DIAG:
            for i in range(16):
                p(f"s_mov_b32 s{70+i}, 0")
        self.rt_stamp(86)
        self.stamp(0)

    def srd(self, s, key):
        off, size = KA[key]
        p = self.p
        p(f"s_load_dwordx2 {sr(s, 2)}, s[0:1], {off}")
        p(f"s_mov_b32 s{s+2}, {size:#x}")
        p(f"s_mov_b32 s{s+3}, 0x20000")

    def stamp(self, i):
        if not DIAG:
            return
        p = self.p
        p("s_memtime s[68:69]")
        p("s_waitcnt lgkmcnt(0)")
        p(f"s_mov_b32 s{70+i}, s68")
        self.nst = max(getattr(self, "nst", 0), i + 1)

    def rt_stamp(self, sreg):
        if not DIAG:
            return
        p = self.p
        p("s_memrealtime s[68:69]")
        p("s_waitcnt lgkmcnt(0)")
        p(f"s_mov_b32 s{sreg}, s68")

    def dump_stamps(self, sws, kidx, v):
        if not DIAG:
            return
        p = self.p
        kidx = CUR[0]
        p("s_waitcnt vmcnt(0)")
        self.stamp(15)
        self.rt_stamp(87)
        p("s_mov_b64 exec, -1")
        p(f"v_lshrrev_b32 v{v}, 6, v0")
        p(f"v_lshlrev_b32 v{v}, 7, v{v}")
        p("s_lshl_b32 s66, s2, 11")
        p(f"s_add_u32 s66, s66, {STAMPS + kidx*0x80000:#x}")
        for i in range(18):
            p(f"v_mov_b32 v{v+1}, s{70+i}")
            p(f"buffer_store_dword v{v+1}, v{v}, {sr(sws,4)}, s66 offen offset:{4*i} ;")

    def finish(self):
        p = self.p
        p.reset()
        p(f"{self.end}:")
        p("s_endpgm")

    def text(self):
        mv, ms, ma = self.p.max_regs()
        nv = mv + 1
        acc_off = (nv + 3) // 4 * 4
        total = acc_off + (ma + 1) if ma >= 0 else nv
        acc_off = max(acc_off, 4)
        self.nvgpr = total
        code = (f".globl {self.name}\n.p2align 8\n.type {self.name},@function\n{self.name}:\n" + self.p.text())
        desc = f""".p2align 6
.amdhsa_kernel {self.name}
  .amdhsa_next_free_vgpr {total}
  .amdhsa_next_free_sgpr 102
  .amdhsa_accum_offset {acc_off}
  .amdhsa_group_segment_fixed_size 0
  .amdhsa_kernarg_size 104
  .amdhsa_user_sgpr_count 2
  .amdhsa_user_sgpr_kernarg_segment_ptr 1
  .amdhsa_system_sgpr_workgroup_id_x 1
.end_amdhsa_kernel
"""
        return code, desc

    def launch_line(self):
        return f"; @launch kernel={self.name} grid=({self.grid},1,1) block=({self.block},1,1) lds={self.lds}"


class Alloc:
    def __init__(self, start=1):
        self.n = start

    def __call__(self, cnt=1, align=None):
        if align is None:
            align = 2 if cnt >= 2 else 1
        self.n = (self.n + align - 1) // align * align
        r = self.n
        self.n += cnt
        return r


def xsum_half(p, v, t):
    p(f"v_mov_b32 v{t}, v{v}")
    p(f"v_permlane32_swap_b32 v{v}, v{t}")
    p(f"v_add_f32 v{v}, v{v}, v{t}")


def xsum_16(p, v, t):
    p(f"v_mov_b32 v{t}, v{v}")
    p(f"v_permlane16_swap_b32 v{v}, v{t}")
    p(f"v_add_f32 v{v}, v{v}, v{t}")


def f32bits(x):
    import struct
    return struct.unpack("<I", struct.pack("<f", x))[0]


def prefetch(p, entries, sSLOT, sXCD, vOFF, vDUM, st):
    for srd, first, count, base, xm, limit, flags in entries:
        L = p.label("pf")
        p(f"s_sub_u32 s{st}, s{sSLOT}, {first}")
        p(f"s_cmp_lt_u32 s{st}, {count}")
        p(f"s_cbranch_scc0 {L}")
        if xm:
            p(f"s_mul_i32 s{st+1}, s{sXCD}, {xm}")
            p(f"s_add_u32 s{st}, s{st}, s{st+1}")
        if limit is not None:
            p(f"s_min_u32 s{st}, s{st}, {limit-1}")
        p(f"s_lshl_b32 s{st}, s{st}, 13")
        if base:
            p(f"s_add_u32 s{st}, s{st}, {base:#x}")
        p(f"buffer_load_dword v{vDUM}, v{vOFF}, {sr(srd,4)}, s{st} offen {flags}".rstrip())
        p(f"{L}:")


NAMEMAP = dict(k1="k1prep_kernel", k2="k2qkv_kernel", k3="k3attn_kernel", k4="k4wo_kernel", k5="k5win_kernel", k6="k6sp_kernel",
               k7="k7out_kernel", k67="k67spout_kernel", k45="k45wowin_kernel", k4_d="k4wo_kernel")
NAMES = []
FULL = [False]


def code_pf(p, idx, sWAVE, nwaves, st):
    idx = CUR[0] + 1
    if "nocpf" in EXP or not FULL[0] or idx >= len(ORDER):
        return
    L = p.label("pc")
    p(f"s_getpc_b64 {sr(st,2)}")
    p(f"{L}:")
    p(f"s_lshr_b32 s{st+2}, s2, 3")
    p(f"s_mul_i32 s{st+2}, s{st+2}, {nwaves}")
    p(f"s_add_u32 s{st+2}, s{st+2}, s{sWAVE}")
    p(f"s_lshl_b32 s{st+2}, s{st+2}, 7")
    p(f"s_min_u32 s{st+2}, s{st+2}, {NAMES[idx+1]}-{NAMES[idx]}-4")
    p(f"s_add_u32 s{st+2}, s{st+2}, {NAMES[idx]}-{L}")
    p(f"s_load_dword s{st+3}, {sr(st,2)}, s{st+2}")


ORDER = []
```

```python
import sys, importlib
sys.path.insert(0, "gen")
from common import *
import re
SC = os.environ.get('SC', 'k2,k4,k5,k6,k67,k45,k4_d').split(',')

HEAD = """; adaLN + MHA + gMLP block, multi-kernel pipeline (generated by gen/gen.py)
"""


def assemble(kernels, path):
    codes, descs = [], []
    for k in kernels:
        c, d = k.text()
        if ORDER[NAMES.index(k.name)] in SC:
            c = re.sub(r"(buffer_store_dword[^\n;]*)(?=\n)", r"\1 sc0 sc1", c)
        codes.append(c)
        descs.append(d)
    out = HEAD + "\n".join(k.launch_line() for k in kernels) + "\n"
    out += '.amdgcn_target "amdgcn-amd-amdhsa--gfx950"\n.text\n'
    out += "\n".join(codes) + "L_text_end:\n"
    out += '.section .rodata,"a"\n' + "".join(descs)
    open(path, "w").write(out)
    for k in kernels:
        print(k.name, "vgpr", k.nvgpr, "lds", k.lds, "ins", len(k.p.ins))


if __name__ == "__main__":
    names = sys.argv[2:] or ["k1", "k2", "k3", "k4", "k5", "k67"]
    ks = []
    ORDER.extend(names)
    NAMES.extend([NAMEMAP[n] for n in names] + ["L_text_end"])
    FULL[0] = names[0] == "k1" and names[-1] in ("k7", "k67")
    for i, n in enumerate(names):
        CUR[0] = i
        ks.append(importlib.import_module(n).build())
    assemble(ks, sys.argv[1])
```

```python
from asmlib import Prog, vr, sr, ar

WS_SIZE = 0x10000000
MODP = 0x0
MODF = 0x10000
CSB = 0x60000
ST1 = 0x20000
ST2 = 0x40000
FLG = 0x70000
FLG2 = 0x78000
MUP = 0x50000
XH = 0x100000
QKV = 0x400000
PART = 0x280000
OU = 0xC00000
X1 = 0xF00000
X1C = 0x1200000
Z1 = 0x1500000
Z2 = 0x1900000
UU = 0x1D00000
WOP = 0x2100000
WI2 = 0x2300000
WO2 = WI2 + 2240 * 1024

W16 = 0x2800000
STAMPS = 0x3000000
CUR = [0]
import os
EXP = os.environ.get("EXP", "")
DIAG = bool(os.environ.get("DIAG"))
F16 = "mup" not in EXP
TAG = F16
if TAG:
    OU, X1C, UU = XH, QKV, QKV + PART
KA = dict(x=(0, 2048 * 640 * 2), wqkv=(8, 640 * 1920 * 2), wo=(16, 640 * 640 * 2), w_in=(32, 640 * 1728 * 2),
          w_sp=(40, 2048 * 2048 * 2), b_sp=(48, 2048 * 2), w_out=(56, 864 * 640 * 2), c=(64, 640 * 2),
          w_mod=(72, 640 * 3840 * 2), out=(80, 2048 * 640 * 2), dbg=(88, 256), ws=(96, WS_SIZE))


class Kernel:
    def __init__(self, name, grid, block, lds):
        self.name, self.grid, self.block, self.lds = name, grid, block, lds
        self.p = Prog()
        self.end = self.p.label("end")

    def begin(self):
        p = self.p
        p(f"s_cmp_ge_u32 s2, {self.grid}")
        p(f"s_cbranch_scc1 {self.end}")
        if "badmap" in EXP:
            p("s_lshr_b32 s3, s2, 5")
            p("s_and_b32 s2, s2, 31")
            p("s_lshl_b32 s2, s2, 3")
            p("s_or_b32 s2, s2, s3")
        if DIAG:
            for i in range(16):
                p(f"s_mov_b32 s{70+i}, 0")
        self.rt_stamp(86)
        self.stamp(0)

    def srd(self, s, key):
        off, size = KA[key]
        p = self.p
        p(f"s_load_dwordx2 {sr(s, 2)}, s[0:1], {off}")
        p(f"s_mov_b32 s{s+2}, {size:#x}")
        p(f"s_mov_b32 s{s+3}, 0x20000")

    def stamp(self, i):
        if not DIAG:
            return
        p = self.p
        p("s_memtime s[68:69]")
        p("s_waitcnt lgkmcnt(0)")
        p(f"s_mov_b32 s{70+i}, s68")
        self.nst = max(getattr(self, "nst", 0), i + 1)

    def rt_stamp(self, sreg):
        if not DIAG:
            return
        p = self.p
        p("s_memrealtime s[68:69]")
        p("s_waitcnt lgkmcnt(0)")
        p(f"s_mov_b32 s{sreg}, s68")

    def dump_stamps(self, sws, kidx, v):
        if not DIAG:
            return
        p = self.p
        kidx = CUR[0]
        p("s_waitcnt vmcnt(0)")
        self.stamp(15)
        self.rt_stamp(87)
        p("s_mov_b64 exec, -1")
        p(f"v_lshrrev_b32 v{v}, 6, v0")
        p(f"v_lshlrev_b32 v{v}, 7, v{v}")
        p("s_lshl_b32 s66, s2, 11")
        p(f"s_add_u32 s66, s66, {STAMPS + kidx*0x80000:#x}")
        for i in range(18):
            p(f"v_mov_b32 v{v+1}, s{70+i}")
            p(f"buffer_store_dword v{v+1}, v{v}, {sr(sws,4)}, s66 offen offset:{4*i} ;")

    def finish(self):
        p = self.p
        p.reset()
        p(f"{self.end}:")
        p("s_endpgm")

    def text(self):
        mv, ms, ma = self.p.max_regs()
        nv = mv + 1
        acc_off = (nv + 3) // 4 * 4
        total = acc_off + (ma + 1) if ma >= 0 else nv
        acc_off = max(acc_off, 4)
        self.nvgpr = total
        code = (f".globl {self.name}\n.p2align 8\n.type {self.name},@function\n{self.name}:\n" + self.p.text())
        desc = f""".p2align 6
.amdhsa_kernel {self.name}
  .amdhsa_next_free_vgpr {total}
  .amdhsa_next_free_sgpr 102
  .amdhsa_accum_offset {acc_off}
  .amdhsa_group_segment_fixed_size 0
  .amdhsa_kernarg_size 104
  .amdhsa_user_sgpr_count 2
  .amdhsa_user_sgpr_kernarg_segment_ptr 1
  .amdhsa_system_sgpr_workgroup_id_x 1
.end_amdhsa_kernel
"""
        return code, desc

    def launch_line(self):
        return f"; @launch kernel={self.name} grid=({self.grid},1,1) block=({self.block},1,1) lds={self.lds}"


class Alloc:
    def __init__(self, start=1):
        self.n = start

    def __call__(self, cnt=1, align=None):
        if align is None:
            align = 2 if cnt >= 2 else 1
        self.n = (self.n + align - 1) // align * align
        r = self.n
        self.n += cnt
        return r


def xsum_half(p, v, t):
    p(f"v_mov_b32 v{t}, v{v}")
    p(f"v_permlane32_swap_b32 v{v}, v{t}")
    p(f"v_add_f32 v{v}, v{v}, v{t}")


def xsum_16(p, v, t):
    p(f"v_mov_b32 v{t}, v{v}")
    p(f"v_permlane16_swap_b32 v{v}, v{t}")
    p(f"v_add_f32 v{v}, v{v}, v{t}")


def cvt_tag1(p, d, lo, hi):
    p(f"v_and_b32 v{lo}, 0xffff0000, v{lo}")
    p(f"v_cvt_pk_bf16_f32 v{d}, v{lo}, v{hi}")
    p(f"v_or_b32 v{d}, 1, v{d}")


def and_tags(p, t, regs):
    regs = [f"v{r}" for r in regs] + ["1"]
    while len(regs) > 1:
        if len(regs) >= 3:
            p(f"v_bitop3_b32 v{t}, {regs[0]}, {regs[1]}, {regs[2]} bitop3:0x80")
            regs = [f"v{t}"] + regs[3:]
        else:
            p(f"v_and_b32 v{t}, {regs[1]}, {regs[0]}")
            regs = [f"v{t}"]
    p(f"v_cmp_eq_u32 vcc, 0, v{t}")


def f32bits(x):
    import struct
    return struct.unpack("<I", struct.pack("<f", x))[0]


def prefetch(p, entries, sSLOT, sXCD, vOFF, vDUM, st):
    for srd, first, count, base, xm, limit, flags in entries:
        L = p.label("pf")
        p(f"s_sub_u32 s{st}, s{sSLOT}, {first}")
        p(f"s_cmp_lt_u32 s{st}, {count}")
        p(f"s_cbranch_scc0 {L}")
        if xm:
            p(f"s_mul_i32 s{st+1}, s{sXCD}, {xm}")
            p(f"s_add_u32 s{st}, s{st}, s{st+1}")
        if limit is not None:
            p(f"s_min_u32 s{st}, s{st}, {limit-1}")
        p(f"s_lshl_b32 s{st}, s{st}, 13")
        if base:
            p(f"s_add_u32 s{st}, s{st}, {base:#x}")
        p(f"buffer_load_dword v{vDUM}, v{vOFF}, {sr(srd,4)}, s{st} offen {flags}".rstrip())
        p(f"{L}:")


NAMEMAP = dict(k1="k1prep_kernel", k2="k2qkv_kernel", k3="k3attn_kernel", k4="k4wo_kernel", k5="k5win_kernel", k6="k6sp_kernel",
               k7="k7out_kernel", k67="k67spout_kernel", k45="k45wowin_kernel", k4_d="k4wo_kernel", k345="k345_kernel")
NAMES = []
FULL = [False]


def code_pf(p, idx, sWAVE, nwaves, st):
    idx = CUR[0] + 1
    if "nocpf" in EXP or not FULL[0] or idx >= len(ORDER):
        return
    L = p.label("pc")
    p(f"s_getpc_b64 {sr(st,2)}")
    p(f"{L}:")
    p(f"s_lshr_b32 s{st+2}, s2, 3")
    p(f"s_mul_i32 s{st+2}, s{st+2}, {nwaves}")
    p(f"s_add_u32 s{st+2}, s{st+2}, s{sWAVE}")
    p(f"s_lshl_b32 s{st+2}, s{st+2}, 7")
    p(f"s_min_u32 s{st+2}, s{st+2}, {NAMES[idx+1]}-{NAMES[idx]}-4")
    p(f"s_add_u32 s{st+2}, s{st+2}, {NAMES[idx]}-{L}")
    p(f"s_load_dword s{st+3}, {sr(st,2)}, s{st+2}")


ORDER = []
```

```python
import sys, importlib
sys.path.insert(0, "gen")
from common import *
import re
SC = os.environ.get('SC', 'k2,k4,k5,k6,k67,k45,k4_d,k345').split(',')

HEAD = """; adaLN + MHA + gMLP block, multi-kernel pipeline (generated by gen/gen.py)
"""


def assemble(kernels, path):
    codes, descs = [], []
    for k in kernels:
        c, d = k.text()
        if ORDER[NAMES.index(k.name)].split('_')[0] in SC:
            c = re.sub(r"(buffer_store_dword[^\n;]*)(?=\n)", r"\1 sc0 sc1", c)
        codes.append(c)
        descs.append(d)
    out = HEAD + "\n".join(k.launch_line() for k in kernels) + "\n"
    out += '.amdgcn_target "amdgcn-amd-amdhsa--gfx950"\n.text\n'
    out += "\n".join(codes) + "L_text_end:\n"
    out += '.section .rodata,"a"\n' + "".join(descs)
    open(path, "w").write(out)
    for k in kernels:
        print(k.name, "vgpr", k.nvgpr, "lds", k.lds, "ins", len(k.p.ins))


if __name__ == "__main__":
    names = sys.argv[2:] or ["k1", "k2", "k345", "k67"]
    ks = []
    ORDER.extend(names)
    NAMES.extend([NAMEMAP.get(n) or NAMEMAP[n.split('_')[0]] for n in names] + ["L_text_end"])
    FULL[0] = names[0] == "k1" and (names[-1] == "k7" or names[-1].startswith("k67"))
    for i, n in enumerate(names):
        CUR[0] = i
        ks.append(importlib.import_module(n).build())
    assemble(ks, sys.argv[1])
```
